```python
import torch

def _softmax(x, axis=-1):
    return torch.softmax(x, dim=axis)

def _gelu(x):
    return torch.nn.functional.gelu(x, approximate='tanh')

def _silu(x):
    return torch.nn.functional.silu(x)

def _sigmoid(x):
    return torch.sigmoid(x)

def _layernorm(x, axis=-1, eps=1e-05):
    m = x.mean(dim=axis, keepdim=True)
    v = x.var(dim=axis, keepdim=True, unbiased=False)
    return (x - m) / torch.sqrt(v + eps)

def _scatter_add(tgt, idx, src, axis=0):
    return tgt.clone().index_add_(axis, idx, src)

def _segment_sum(src, seg, n):
    out = torch.zeros((n,) + src.shape[1:], dtype=src.dtype)
    return out.index_add_(0, seg, src)

def _pad(x, pw):
    flat = tuple((v for pair in reversed(pw) for v in pair))
    return torch.nn.functional.pad(x, flat)
kernel_name = 'interleave_layers__spectral_fnet__mixer_gmlp__prompt'

def setup_inputs():

    _w = lambda a: (lambda t: t.to(torch.bfloat16) if t.is_floating_point() else t)(torch.as_tensor(a))

    def _A_setup():
        B, S, D = (1, 2048, 1024)
        ns = torch.arange(S)[:, None] * torch.arange(S)[None, :]
        nd = torch.arange(D)[:, None] * torch.arange(D)[None, :]
        Ws_re = torch.cos(-2.0 * torch.pi * ns / S).to(float)
        Ws_im = torch.sin(-2.0 * torch.pi * ns / S).to(float)
        Wd_re = torch.cos(-2.0 * torch.pi * nd / D).to(float)
        Wd_im = torch.sin(-2.0 * torch.pi * nd / D).to(float)
        return {'x': _w((lambda *s: torch.randn(*s, dtype=torch.bfloat16) * 0.05)(B, S, D)), 'dft_seq_re': _w(Ws_re), 'dft_seq_im': _w(Ws_im), 'dft_hid_re': _w(Wd_re), 'dft_hid_im': _w(Wd_im)}
    _A_in = _A_setup()

    def _B_setup():
        B, S, D, F = (1, 2048, 1024, 3584)
        Fh = F // 2
        return {'x': _w((lambda *s: torch.randn(*s, dtype=torch.bfloat16) * 0.05)(B, S, D)), 'w_in': _w((lambda *s: torch.randn(*s, dtype=torch.bfloat16) * 1.6)(D, 2 * Fh)), 'w_sp': _w(0.01 * (lambda *s: torch.randn(*s, dtype=torch.bfloat16) * 1.6)(S, S)), 'b_sp': _w(1.0 + 0.01 * (lambda *s: torch.randn(*s, dtype=torch.bfloat16) * 1.6)(S)), 'w_out': _w((lambda *s: torch.randn(*s, dtype=torch.bfloat16) * 1.6)(Fh, D))}
    _B_in = _B_setup()
    return {'A_x': _A_in['x'], 'A_dft_seq_re': _A_in['dft_seq_re'], 'A_dft_seq_im': _A_in['dft_seq_im'], 'A_dft_hid_re': _A_in['dft_hid_re'], 'A_dft_hid_im': _A_in['dft_hid_im'], 'B_x': _B_in['x'], 'B_w_in': _B_in['w_in'], 'B_w_sp': _B_in['w_sp'], 'B_b_sp': _B_in['b_sp'], 'B_w_out': _B_in['w_out']}

def reference(A_x, A_dft_seq_re, A_dft_seq_im, A_dft_hid_re, A_dft_hid_im, B_x, B_w_in, B_w_sp, B_b_sp, B_w_out):

    def _A_ref(x, dft_seq_re, dft_seq_im, dft_hid_re, dft_hid_im):
        a = torch.einsum('bsd,ed->bse', x, dft_hid_re)
        b = torch.einsum('bsd,ed->bse', x, dft_hid_im)
        y = torch.einsum('ts,bse->bte', dft_seq_re, a) - torch.einsum('ts,bse->bte', dft_seq_im, b)
        return y

    def _B_ref(x, w_in, w_sp, b_sp, w_out):
        B, S, D = x.shape
        F = w_in.shape[-1]
        Fh = F // 2
        z = _gelu(torch.einsum('bsd,df->bsf', x, w_in))
        z1 = z[..., :Fh].clone()
        z2 = _layernorm(z[..., Fh:], axis=-1)
        g = torch.einsum('ts,bsf->btf', w_sp, z2) + b_sp[None, :, None]
        return torch.einsum('bsf,fd->bsd', z1 * g, w_out)
    x = A_x
    x = x + _A_ref(_layernorm(x, axis=-1), A_dft_seq_re, A_dft_seq_im, A_dft_hid_re, A_dft_hid_im)
    x = x + _B_ref(_layernorm(x, axis=-1), B_w_in, B_w_sp, B_b_sp, B_w_out)
    x = x + _A_ref(_layernorm(x, axis=-1), A_dft_seq_re, A_dft_seq_im, A_dft_hid_re, A_dft_hid_im)
    x = x + _B_ref(_layernorm(x, axis=-1), B_w_in, B_w_sp, B_b_sp, B_w_out)
    return x
```

```python
import re

class Kern:
    def __init__(self, name):
        self.name = name
        self.l = []
        self.nv = 0
        self.ns = 0
        self.uid = 0
    def __call__(self, s):
        for line in s.strip('\n').split('\n'):
            self.l.append('  ' + line.strip())
    def lab(self, s):
        self.l.append(s + ':')
    def newlab(self, p='L'):
        self.uid += 1
        return f'{self.name}_{p}{self.uid}'
    def text(self):
        return '\n'.join(self.l)

def v(i, n=1):
    return f'v{i}' if n == 1 else f'v[{i}:{i+n-1}]'
def a(i, n=1):
    return f'a{i}' if n == 1 else f'a[{i}:{i+n-1}]'
def s(i, n=1):
    return f's{i}' if n == 1 else f's[{i}:{i+n-1}]'

class Alloc:
    def __init__(self, start=0, limit=256):
        self.p = start; self.limit = limit
    def get(self, n=1, align=1):
        self.p = (self.p + align - 1) // align * align
        r = self.p
        self.p += n
        assert self.p <= self.limit, f'out of regs {self.p} > {self.limit}'
        return r

def kd(name, nvgpr, nsgpr=96, accum=None, wgy=False):
    if accum is None:
        accum = (nvgpr + 3) // 4 * 4
    accum = min(accum, 256)
    t = f'''.p2align 6
.amdhsa_kernel {name}
  .amdhsa_next_free_vgpr {nvgpr}
  .amdhsa_next_free_sgpr {nsgpr}
  .amdhsa_accum_offset {accum}
  .amdhsa_group_segment_fixed_size 0
  .amdhsa_kernarg_size 104
  .amdhsa_user_sgpr_count 2
  .amdhsa_user_sgpr_kernarg_segment_ptr 1
  .amdhsa_system_sgpr_workgroup_id_x 1
'''
    if wgy:
        t += '  .amdhsa_system_sgpr_workgroup_id_y 1\n'
    t += '''  .amdhsa_float_denorm_mode_32 3
  .amdhsa_float_denorm_mode_16_64 3
.end_amdhsa_kernel
'''
    return t

B128_GROUPS = [list(range(0,4))+list(range(12,16))+list(range(20,28)),
               list(range(4,12))+list(range(16,20))+list(range(28,32)),
               list(range(32,36))+list(range(44,48))+list(range(52,60)),
               list(range(36,44))+list(range(48,52))+list(range(60,64))]
def conflicts_b128(addrs):
    worst = 1
    for g in B128_GROUPS:
        banks = {}
        for l in g:
            for d in range(4):
                w = addrs[l]//4 + d
                banks.setdefault(w % 64, set()).add(w)
        worst = max(worst, max(len(x) for x in banks.values()))
    return worst
def conflicts_b64(addrs):
    worst = 1
    for g in (range(0,32), range(32,64)):
        banks = {}
        for l in g:
            for d in range(2):
                w = addrs[l]//4 + d
                banks.setdefault(w % 64, set()).add(w)
        worst = max(worst, max(len(x) for x in banks.values()))
    return worst

import numpy as np
class X:
    def __init__(self, op, *args): self.op = op; self.args = args
    def __add__(s_, o): return X('add', s_, o)
    __radd__ = __add__
    def __xor__(s_, o): return X('xor', s_, o)
    __rxor__ = __xor__
    def __and__(s_, o): return X('and', s_, o)
    __rand__ = __and__
    def __or__(s_, o): return X('or', s_, o)
    def __lshift__(s_, o): return X('shl', s_, o)
    def __rshift__(s_, o): return X('shr', s_, o)
    def __mul__(s_, o): return X('mul', s_, o)
    __rmul__ = __mul__
    def ev(self, lane):
        if self.op == 'lane': return lane
        a = [x.ev(lane) if isinstance(x, X) else x for x in self.args]
        return {'add': lambda: a[0]+a[1], 'xor': lambda: a[0]^a[1], 'and': lambda: a[0]&a[1], 'or': lambda: a[0]|a[1],
                'shl': lambda: a[0]<<a[1], 'shr': lambda: a[0]>>a[1], 'mul': lambda: a[0]*a[1]}[self.op]()
    def vals(self, n=64):
        return [int(x) for x in self.ev(np.arange(n, dtype=np.int64))]
LANE = X('lane')
def emit_x(k, e, dst, tmps, lane_reg=0):
    if not isinstance(e, X):
        k(f'v_mov_b32 {v(dst)}, {e}'); return
    if e.op == 'lane':
        k(f'v_mov_b32 {v(dst)}, {v(lane_reg)}'); return
    a, b = e.args
    def src(x, d, t):
        if isinstance(x, X):
            if x.op == 'lane': return v(lane_reg)
            emit_x(k, x, d, t, lane_reg); return v(d)
        return None
    if not isinstance(b, X):
        ra = src(a, dst, tmps)
        if b == 0 and e.op in ('add', 'xor', 'or', 'shl', 'shr'):
            if ra != v(dst): k(f'v_mov_b32 {v(dst)}, {ra}')
            return
        if e.op == 'mul':
            if b & (b-1) == 0:
                k(f'v_lshlrev_b32 {v(dst)}, {b.bit_length()-1}, {ra}')
            else:
                k(f'v_mul_u32_u24 {v(dst)}, {b}, {ra}')
            return
        ins = {'add': 'v_add_u32', 'xor': 'v_xor_b32', 'and': 'v_and_b32', 'or': 'v_or_b32', 'shl': 'v_lshlrev_b32', 'shr': 'v_lshrrev_b32'}[e.op]
        k(f'{ins} {v(dst)}, {b}, {ra}')
        return
    ra = src(a, dst, tmps)
    rb = src(b, tmps[0], tmps[1:])
    ins = {'add': 'v_add_u32', 'xor': 'v_xor_b32', 'and': 'v_and_b32', 'or': 'v_or_b32', 'mul': 'v_mul_u32_u24'}[e.op]
    k(f'{ins} {v(dst)}, {ra}, {rb}')
```

```python
from gemm import *
import struct
def f2u(x): return struct.unpack('<I', struct.pack('<f', x))[0]
MB = 1 << 20
WS = dict(X=0, AB=8*MB, Z1=16*MB, Z2=24*MB, U=32*MB, XST=40*MB, ZST=41*MB, HSUM=42*MB, WSUM=43*MB)
SZ = dict(X=4*MB, AB=8*MB, Z1=2048*1792*2, Z2=2048*1792*2, U=2048*1792*2, XST=2048*128, ZST=2048*128, HSUM=8192, WSUM=16*3584*4)
def ws(n): return ('ws', WS[n], SZ[n])
RHO = LANE & 15
QG = LANE >> 4
PERMROW = RHO + (RHO & 12)

def pkb(r):
    return (v(r & ~1, 2), r & 1)
def pk_fma(k, d, a, b, c, ba=None, bb=None, bc=None):
    ops = []; lo = []; hi = []
    for r, bc_ in ((a, ba), (b, bb), (c, bc)):
        if isinstance(r, str): ops.append(r); lo.append(0); hi.append(1 if not bc_ else 0)
        elif bc_: t, s_ = pkb(r); ops.append(t); lo.append(s_); hi.append(s_)
        else: assert r % 2 == 0; ops.append(v(r, 2)); lo.append(0); hi.append(1)
    k(f'v_pk_fma_f32 {v(d,2)}, {ops[0]}, {ops[1]}, {ops[2]} op_sel:[{lo[0]},{lo[1]},{lo[2]}] op_sel_hi:[{hi[0]},{hi[1]},{hi[2]}]')
def pk2(k, ins, d, a, b, ba=None, bb=None):
    ops = []; lo = []; hi = []
    for r, bc_ in ((a, ba), (b, bb)):
        if isinstance(r, str): ops.append(r); lo.append(0); hi.append(1 if not bc_ else 0)
        elif bc_: t, s_ = pkb(r); ops.append(t); lo.append(s_); hi.append(s_)
        else: assert r % 2 == 0; ops.append(v(r, 2)); lo.append(0); hi.append(1)
    k(f'{ins} {v(d,2)}, {ops[0]}, {ops[1]} op_sel:[{lo[0]},{lo[1]}] op_sel_hi:[{hi[0]},{hi[1]}]')

def row_stats_to_lds(g, k, srd, srow0, ncols, tab, neg_sreg=None):
    L = k.newlab('nostat')
    b = g.bufs[0]; t0, t1, t2, t3 = g.tm
    k('s_cmp_ge_u32 s14, 2')
    k(f's_cbranch_scc1 {L}')
    k('s_lshl_b32 s3, s14, 6')
    k(f'v_add_u32 {v(t0)}, s3, v0')
    k(f'v_lshlrev_b32 {v(t1)}, 7, {v(t0)}')
    for i in range(8):
        k(f'buffer_load_dwordx4 {v(b+4*i,4)}, {v(t1)}, {s(srd,4)}, s{srow0} offen offset:{16*i}')
    k('s_waitcnt vmcnt(0)')
    for st in (8, 4, 2, 1):
        for i in range(st):
            pk2(k, 'v_pk_add_f32', b+2*i, b+2*i, b+2*(i+st))
    k(f'v_mul_f32 {v(b)}, {f2u(1.0/ncols)}, {v(b)}')
    k(f'v_mul_f32 {v(b+1)}, {f2u(1.0/ncols)}, {v(b+1)}')
    k(f'v_fma_f32 {v(b+1)}, -{v(b)}, {v(b)}, {v(b+1)}')
    k(f'v_max_f32 {v(b+1)}, 0, {v(b+1)}')
    k(f'v_add_f32 {v(b+1)}, {f2u(1e-5)}, {v(b+1)}')
    k(f'v_rsq_f32 {v(b+1)}, {v(b+1)}')
    if neg_sreg is not None:
        k(f'v_mul_f32 {v(b+1)}, s{neg_sreg}, {v(b+1)}')
    k(f'v_mul_f32 {v(b)}, {v(b)}, {v(b+1)}')
    k(f'v_sub_f32 {v(b)}, 0, {v(b)}')
    k(f'v_lshlrev_b32 {v(t1)}, 2, {v(t0)}')
    k(f'ds_write_b32 {v(t1)}, {v(b+1)} offset:{tab}') if tab < 65536 else None
    if tab >= 65536 - 512:
        k(f'v_add_u32 {v(t1)}, {tab}, {v(t1)}')
        k(f'ds_write_b32 {v(t1)}, {v(b+1)}')
        k(f'ds_write_b32 {v(t1)}, {v(b)} offset:512')
    else:
        k(f'ds_write_b32 {v(t1)}, {v(b)} offset:{tab+512}')
    k.lab(L)

class EpiG1:
    lds_extra = 1024
    def load_ptrs(self, g, k):
        g.load_ptr(k, 28, ws('AB')); g.load_ptr(k, 32, ws('XST')); g.load_ptr(k, 36, ws('HSUM'))
    def prologue(self, g, k):
        va = g.va
        g.mk_srd(k, 28, ws('AB')); g.mk_srd(k, 32, ws('XST')); g.mk_srd(k, 36, ws('HSUM'))
        self.tab = g.slot * g.NS
        self.c = va.get(g.nb, 2)
        t0 = g.tm[0]
        emit_x(k, PERMROW << 2, t0, g.tm[1:])
        k(f's_lshl_b32 s3, s13, 9'); k(f's_lshl_b32 s19, s25, 8'); k('s_add_u32 s3, s3, s19')
        for j in range(g.nb):
            k(f'buffer_load_dword {v(self.c+j)}, {v(t0)}, s[36:39], s3 offen offset:{(32*(j>>1) + 4*(j&1))*4}')
        k('s_cmp_ge_u32 s13, 8')
        k(f's_cselect_b32 s56, {f2u(-1.0)}, {f2u(1.0)}')
        k(f's_lshl_b32 s57, s12, 14')
        row_stats_to_lds(g, k, 32, 57, 1024, self.tab, neg_sreg=56)
    def emit(self, g, k):
        va = g.va
        R = g.bufs[0]; NM = R + 16; pk = g.bufs[1]
        t0, vo = g.tm[0], g.tm[1]
        emit_x(k, QG << 5, t0, g.tm[2:])
        k(f's_lshl_b32 s3, s24, 8'); k(f's_add_u32 s3, s3, {self.tab}')
        k(f'v_add_u32 {v(t0)}, s3, {v(t0)}')
        for p in range(2):
            for h in range(2):
                k(f'ds_read_b128 {v(R+8*p+4*h,4)}, {v(t0)} offset:{128*p+16*h}')
                k(f'ds_read_b128 {v(NM+8*p+4*h,4)}, {v(t0)} offset:{512+128*p+16*h}')
        k('s_and_b32 s3, s13, 7'); k('s_lshl_b32 s3, s3, 3'); k('s_lshl_b32 s19, s25, 2'); k('s_add_u32 s3, s3, s19')
        k('s_lshl_b32 s3, s3, 7')
        k('s_lshr_b32 s19, s13, 3'); k('s_lshl_b32 s19, s19, 6'); k('s_add_u32 s3, s3, s19')
        k('s_lshl_b32 s19, s12, 2'); k('s_add_u32 s3, s3, s19')
        k('s_lshl_b32 s19, s24, 1'); k('s_add_u32 s3, s3, s19')
        k('s_lshl_b32 s3, s3, 10')
        k(f'v_lshlrev_b32 {v(vo)}, 4, v0')
        k('s_waitcnt vmcnt(0) lgkmcnt(0)')
        n = 0
        for j in range(g.nb):
            k(f's_add_u32 s26, s3, {j*128*1024}')
            for p in range(2):
                o = pk + (n % 4) * 4; n += 1
                for T in range(2):
                    c = g.acc + ((2*p+T) * g.nb + j) * 4
                    for h in range(2):
                        pk2(k, 'v_pk_mul_f32', c+2*h, c+2*h, R+8*p+4*T+2*h)
                        pk_fma(k, c+2*h, NM+8*p+4*T+2*h, self.c+j, c+2*h, bb=True)
                    for h in range(2):
                        k(f'v_cvt_pk_bf16_f32 {v(o+2*T+h)}, {v(c+2*h)}, {v(c+2*h+1)}')
                k(f'buffer_store_dwordx4 {v(o,4)}, {v(vo)}, s[28:31], s26 offen offset:{p*1024}')

class EpiRes:
    def __init__(self, shuffle=False, final=False):
        self.shuffle = shuffle; self.final = final
    def load_ptrs(self, g, k):
        g.load_ptr(k, 28, ws('X')); g.load_ptr(k, 32, ws('XST'))
        if self.final: g.load_ptr(k, 36, ('out', 0, 4*MB))
    def prologue(self, g, k):
        va = g.va
        g.mk_srd(k, 28, ws('X')); g.mk_srd(k, 32, ws('XST'))
        if self.final: g.mk_srd(k, 36, ('out', 0, 4*MB))
        np_ = g.na // 2
        self.xo = va.get(np_ * g.nb * 4, 4)
        self.vo = va.get()
        k(f's_mul_i32 s56, s13, {g.TN//16}'); k(f's_mul_i32 s19, s25, {g.nb}'); k('s_add_u32 s56, s56, s19')
        k('s_lshl_b32 s56, s56, 5')
        k(f's_mul_i32 s19, s12, {g.TM//32}'); k('s_add_u32 s56, s56, s19')
        k(f's_mul_i32 s19, s24, {np_}'); k('s_add_u32 s56, s56, s19')
        k('s_lshl_b32 s56, s56, 10')
        k(f'v_lshlrev_b32 {v(self.vo)}, 4, v0')
        for j in range(g.nb):
            k(f's_add_u32 s26, s56, {j*32*1024}')
            for p in range(np_):
                k(f'buffer_load_dwordx4 {v(self.xo+(j*np_+p)*4,4)}, {v(self.vo)}, s[28:31], s26 offen offset:{p*1024}')
    def emit(self, g, k):
        np_ = g.na // 2; nb = g.nb
        tmp = g.bufs[0]; st = g.bufs[1]
        A = lambda p, T, j: g.acc + ((2*p+T) * nb + j) * 4
        if self.shuffle:
            for ins in ('v_permlane32_swap_b32', 'v_permlane16_swap_b32'):
                for j in range(nb):
                    for p in range(np_):
                        for r in range(4):
                            k(f'{ins} {v(A(p,0,j)+r)}, {v(A(p,1,j)+r)}')
        if self.final:
            vf = g.tm[0]
            emit_x(k, (PERMROW << 11) + (QG << 4), vf, g.tm[1:])
            k(f's_mul_i32 s57, s13, {g.TN*2048}'); k(f's_mul_i32 s19, s25, {g.WTN*2048}'); k('s_add_u32 s57, s57, s19')
            k(f's_mul_i32 s19, s12, {g.TM*2}'); k('s_add_u32 s57, s57, s19')
            k(f's_mul_i32 s19, s24, {g.WTM*2}'); k('s_add_u32 s57, s57, s19')
        k('s_waitcnt vmcnt(0)')
        k(f's_mov_b32 s19, 0xffff0000')
        for j in range(nb):
            if self.final: k(f's_add_u32 s26, s57, {(32*(j>>1) + 4*(j&1))*2048}')
            else: k(f's_add_u32 s26, s56, {j*32*1024}')
            for p in range(np_):
                x = self.xo + (j*np_+p)*4
                for T in range(2):
                    c = A(p, T, j)
                    for h in range(2):
                        xr = x + 2*T + h
                        k(f'v_lshlrev_b32 {v(tmp)}, 16, {v(xr)}')
                        k(f'v_and_b32 {v(tmp+1)}, s19, {v(xr)}')
                        pk2(k, 'v_pk_add_f32', c+2*h, c+2*h, tmp)
                        k(f'v_cvt_pk_bf16_f32 {v(xr)}, {v(c+2*h)}, {v(c+2*h+1)}')
                        if not self.final:
                            k(f'v_lshlrev_b32 {v(c+2*h)}, 16, {v(xr)}')
                            k(f'v_and_b32 {v(c+2*h+1)}, s19, {v(xr)}')
                            first = (p == 0 and T == 0 and h == 0)
                            if first:
                                k(f'v_mov_b32 {v(st+4*j)}, {v(c+2*h)}'); k(f'v_mov_b32 {v(st+4*j+1)}, {v(c+2*h+1)}')
                                pk2(k, 'v_pk_mul_f32', st+4*j+2, c+2*h, c+2*h)
                            else:
                                pk2(k, 'v_pk_add_f32', st+4*j, st+4*j, c+2*h)
                                pk_fma(k, st+4*j+2, c+2*h, c+2*h, st+4*j+2)
                if self.final:
                    k(f'buffer_store_dwordx4 {v(x,4)}, {v(vf)}, s[36:39], s26 offen offset:{p*64}')
                else:
                    k(f'buffer_store_dwordx4 {v(x,4)}, {v(self.vo)}, s[28:31], s26 offen offset:{p*1024}')
        if self.final: return
        for j in range(nb):
            k(f'v_add_f32 {v(st+4*j)}, {v(st+4*j)}, {v(st+4*j+1)}')
            k(f'v_add_f32 {v(st+4*j+2)}, {v(st+4*j+2)}, {v(st+4*j+3)}')
        for j in range(nb):
            k(f'v_permlane32_swap_b32 {v(st+4*j)}, {v(st+4*j+2)}')
        for j in range(nb):
            k(f'v_add_f32 {v(st+4*j)}, {v(st+4*j)}, {v(st+4*j+2)}')
        va_ = g.tm[0]
        emit_x(k, ((PERMROW + ((QG & 1) << 2)) << 7) + ((QG >> 1) << 2), va_, g.tm[1:])
        k(f's_mul_i32 s3, s13, {g.TN*128}'); k(f's_mul_i32 s19, s25, {g.WTN*128}'); k('s_add_u32 s3, s3, s19')
        k(f's_mul_i32 s19, s12, {g.WM*8}'); k('s_add_u32 s3, s3, s19')
        k(f's_lshl_b32 s19, s24, 3'); k('s_add_u32 s3, s3, s19')
        assert g.GM * g.WM == 16
        for jp in range(nb // 2):
            a_, b_ = st + 8*jp, st + 8*jp + 4
            k(f'v_permlane16_swap_b32 {v(a_)}, {v(b_)}')
            k(f'v_add_f32 {v(a_)}, {v(a_)}, {v(b_)}')
            if jp: k(f's_add_u32 s3, s3, {32*128}')
            k(f'buffer_store_dword {v(a_)}, {v(va_)}, s[32:35], s3 offen')

K1 = -2.0 * 0.7978845608028654 * 1.4426950408889634
K2 = K1 * 0.044715
def gelu2(k, c, t):
    pk2(k, 'v_pk_mul_f32', t, c, c)
    pk_fma(k, t, t, 's[62:63]', 'v[2:3]')
    pk2(k, 'v_pk_mul_f32', t, t, c)
    k(f'v_exp_f32 {v(t)}, {v(t)}'); k(f'v_exp_f32 {v(t+1)}, {v(t+1)}')
    pk2(k, 'v_pk_add_f32', t, t, '1.0', bb=True)
    k(f'v_rcp_f32 {v(t)}, {v(t)}'); k(f'v_rcp_f32 {v(t+1)}, {v(t+1)}')
    pk2(k, 'v_pk_mul_f32', c, c, t)
def gelu_multi(k, cs, ts):
    for c, t in zip(cs, ts): pk2(k, 'v_pk_mul_f32', t, c, c)
    for c, t in zip(cs, ts): pk_fma(k, t, t, 's[62:63]', 'v[2:3]')
    for c, t in zip(cs, ts): pk2(k, 'v_pk_mul_f32', t, t, c)
    for c, t in zip(cs, ts): k(f'v_exp_f32 {v(t)}, {v(t)}'); k(f'v_exp_f32 {v(t+1)}, {v(t+1)}')
    for c, t in zip(cs, ts): pk2(k, 'v_pk_add_f32', t, t, '1.0', bb=True)
    for c, t in zip(cs, ts): k(f'v_rcp_f32 {v(t)}, {v(t)}'); k(f'v_rcp_f32 {v(t+1)}, {v(t+1)}')
    for c, t in zip(cs, ts): pk2(k, 'v_pk_mul_f32', c, c, t)

class EpiG3:
    lds_extra = 2048
    paths = [False, True]
    def load_ptrs(self, g, k):
        g.load_ptr(k, 28, ws('Z1')); g.load_ptr(k, 32, ws('XST')); g.load_ptr(k, 36, ws('WSUM'))
        g.load_ptr(k, 64, ws('Z2')); g.load_ptr(k, 68, ws('ZST'))
    def prologue(self, g, k):
        for r, n in ((28, 'Z1'), (32, 'XST'), (36, 'WSUM'), (64, 'Z2'), (68, 'ZST')): g.mk_srd(k, r, ws(n))
        self.tab = g.slot * g.NS
        k(f's_lshl_b32 s57, s13, 14')
        row_stats_to_lds(g, k, 32, 57, 1024, self.tab)
        L = k.newlab('now')
        b = g.bufs[0]; t0, t1 = g.tm[0], g.tm[1]
        k('s_cmp_lt_u32 s14, 2'); k(f's_cbranch_scc1 {L}')
        k('s_sub_u32 s3, s14, 2'); k('s_lshl_b32 s3, s3, 6')
        k(f'v_add_u32 {v(t0)}, s3, v0'); k(f'v_min_u32 {v(t0)}, 111, {v(t0)}')
        k(f'v_lshlrev_b32 {v(t0)}, 3, {v(t0)}')
        k(f's_mul_i32 s3, s12, {224*4}')
        for i in range(16):
            k(f'buffer_load_dwordx2 {v(b+2*i,2)}, {v(t0)}, s[36:39], s3 offen')
            if i < 15: k(f's_add_u32 s3, s3, {3584*4}')
        k('s_waitcnt vmcnt(0)')
        for st in (8, 4, 2, 1):
            for i in range(st): pk2(k, 'v_pk_add_f32', b+2*i, b+2*i, b+2*(i+st))
        k(f'v_add_u32 {v(t0)}, {self.tab+1024}, {v(t0)}')
        k(f'ds_write_b64 {v(t0)}, {v(b,2)}')
        k.lab(L)
        k(f's_mov_b32 s62, {f2u(K2)}'); k(f's_mov_b32 s63, {f2u(K2)}')
    def branch(self, g, k, lab):
        k('s_cmp_ge_u32 s12, 8'); k(f's_cbranch_scc1 {lab}')
    def emit(self, g, k, path):
        na, nb = g.na, g.nb
        A = lambda i, j: g.acc + (i*nb + j)*4
        B0, B1 = g.bufs
        t4, t5 = g.tm[2], g.tm[3]
        assert g.tm[0] == 2
        if path == 0:
            W = B0; R = B0 + 28; NM = B0 + 32; tmp = B1; pk = B1 + 16
            emit_x(k, QG << 4, t4, [2, 3])
            k(f's_mul_i32 s3, s24, {112*4}'); k(f's_add_u32 s3, s3, {self.tab+1024}')
            k(f'v_add_u32 {v(t4)}, s3, {v(t4)}')
            for i in range(na): k(f'ds_read_b128 {v(W+4*i,4)}, {v(t4)} offset:{64*i}')
            emit_x(k, PERMROW << 2, t5, [2, 3])
            k(f's_lshl_b32 s3, s25, 8'); k(f's_add_u32 s3, s3, {self.tab}')
            k(f'v_add_u32 {v(t5)}, s3, {v(t5)}')
            for j in range(nb):
                o = (32*(j>>1) + 4*(j&1))*4
                k(f'ds_read_b32 {v(R+j)}, {v(t5)} offset:{o}')
                k(f'ds_read_b32 {v(NM+j)}, {v(t5)} offset:{512+o}')
            k(f'v_mov_b32 v2, {f2u(K1)}'); k(f'v_mov_b32 v3, {f2u(K1)}')
            k('s_lshl_b32 s3, s13, 2'); k('s_lshl_b32 s19, s25, 1'); k('s_add_u32 s3, s3, s19')
            k('s_mul_i32 s3, s3, 448')
            k('s_mul_i32 s19, s12, 56'); k('s_add_u32 s3, s3, s19')
            k('s_mul_i32 s19, s24, 28'); k('s_add_u32 s3, s3, s19')
            k('s_lshl_b32 s3, s3, 8')
            k(f'v_lshlrev_b32 {v(t4)}, 4, v0')
            k('s_waitcnt lgkmcnt(0)')
            n = 0
            for a_ in range(2):
                for i in range(na):
                    o = pk + (n % 4)*4; n += 1
                    cs = []
                    for T in range(2):
                        j = 2*a_ + T
                        for h in range(2):
                            c = A(i, j) + 2*h
                            pk2(k, 'v_pk_mul_f32', c, c, R+j, bb=True)
                            pk_fma(k, c, W+4*i+2*h, NM+j, c, bb=True)
                            cs.append(c)
                    gelu_multi(k, cs, [tmp+2*x for x in range(4)])
                    for x, c in enumerate(cs):
                        k(f'v_cvt_pk_bf16_f32 {v(o+x)}, {v(c)}, {v(c+1)}')
                    k(f's_add_u32 s26, s3, {a_*448*256 + i*1024}')
                    k(f'buffer_store_dwordx4 {v(o,4)}, {v(t4)}, s[28:31], s26 offen')
        else:
            R = B0; NM = B0 + 16; W = B0 + 32; tmp = B1; pk = B1 + 8
            S = g.va.get(32, 2)
            emit_x(k, QG << 5, t4, [2, 3])
            k(f's_lshl_b32 s3, s25, 8'); k(f's_add_u32 s3, s3, {self.tab}')
            k(f'v_add_u32 {v(t4)}, s3, {v(t4)}')
            for a_ in range(2):
                for h in range(2):
                    k(f'ds_read_b128 {v(R+8*a_+4*h,4)}, {v(t4)} offset:{128*a_+16*h}')
                    k(f'ds_read_b128 {v(NM+8*a_+4*h,4)}, {v(t4)} offset:{512+128*a_+16*h}')
            emit_x(k, RHO << 2, t5, [2, 3])
            k(f's_mul_i32 s3, s24, {112*4}'); k(f's_add_u32 s3, s3, {self.tab+1024}')
            k(f'v_add_u32 {v(t5)}, s3, {v(t5)}')
            for i in range(na): k(f'ds_read_b32 {v(W+i)}, {v(t5)} offset:{64*i}')
            emit_x(k, (((RHO >> 2) & 1) << 16) + (QG << 8) + ((((RHO >> 3) << 2) + (RHO & 3)) << 4), t4, [2, 3, t5])
            k(f'v_mov_b32 v2, {f2u(K1)}'); k(f'v_mov_b32 v3, {f2u(K1)}')
            k('s_sub_u32 s56, s12, 8'); k('s_mul_i32 s56, s56, 14'); k('s_mul_i32 s19, s24, 7'); k('s_add_u32 s56, s56, s19')
            k('s_lshl_b32 s57, s13, 2'); k('s_lshl_b32 s19, s25, 1'); k('s_add_u32 s57, s57, s19'); k('s_lshl_b32 s57, s57, 10')
            k('s_mov_b32 s58, 0xffff0000')
            k('s_waitcnt lgkmcnt(0)')
            n = 0
            for i in range(na):
                k(f's_add_u32 s3, s56, {i}')
                k('s_lshr_b32 s19, s3, 1'); k('s_lshl_b32 s19, s19, 17')
                k('s_and_b32 s3, s3, 1'); k('s_lshl_b32 s3, s3, 7')
                k('s_add_u32 s3, s3, s19'); k('s_add_u32 s26, s3, s57')
                for a_ in range(2):
                    o = pk + (n % 4)*4; n += 1
                    cs = []
                    for T in range(2):
                        j = 2*a_ + T
                        for h in range(2):
                            c = A(i, j) + 2*h
                            pk2(k, 'v_pk_mul_f32', c, c, R+4*j+2*h)
                            pk_fma(k, c, NM+4*j+2*h, W+i, c, bb=True)
                            cs.append(c)
                    gelu_multi(k, cs, [tmp+2*x for x in range(4)])
                    for x, c in enumerate(cs):
                        k(f'v_cvt_pk_bf16_f32 {v(o+x)}, {v(c)}, {v(c+1)}')
                    k(f'buffer_store_dwordx4 {v(o,4)}, {v(t4)}, s[64:67], s26 offen offset:{a_*1024}')
                    for x, c in enumerate(cs):
                        k(f'v_lshlrev_b32 {v(c)}, 16, {v(o+x)}')
                        k(f'v_and_b32 {v(c+1)}, s58, {v(o+x)}')
                        sidx = 8*a_ + 2*x
                        if i == 0:
                            k(f'v_mov_b32 {v(S+sidx)}, {v(c)}'); k(f'v_mov_b32 {v(S+sidx+1)}, {v(c+1)}')
                            pk2(k, 'v_pk_mul_f32', S+16+sidx, c, c)
                        else:
                            pk2(k, 'v_pk_add_f32', S+sidx, S+sidx, c)
                            pk_fma(k, S+16+sidx, c, c, S+16+sidx)
            C = g.acc
            for sl in range(16):
                k(f'v_add_f32_dpp {v(C+sl)}, {v(S+sl)}, {v(S+sl)} row_ror:8 row_mask:0xf bank_mask:0x3')
                k(f'v_add_f32_dpp {v(C+sl)}, {v(S+16+sl)}, {v(S+16+sl)} row_ror:8 row_mask:0xf bank_mask:0xc')
            D = g.acc + 16
            for sl in range(8):
                k(f'v_add_f32_dpp {v(D+sl)}, {v(C+sl)}, {v(C+sl)} row_shl:4 row_mask:0xf bank_mask:0x5')
                k(f'v_add_f32_dpp {v(D+sl)}, {v(C+8+sl)}, {v(C+8+sl)} row_shr:4 row_mask:0xf bank_mask:0xa')
            for qp in ('[1,0,3,2]', '[2,3,0,1]'):
                for sl in range(8):
                    k(f'v_add_f32_dpp {v(D+sl)}, {v(D+sl)}, {v(D+sl)} quad_perm:{qp} row_mask:0xf bank_mask:0xf')
            emit_x(k, (((((RHO >> 2) & 1) << 5) + (QG << 3)) << 7) + ((RHO >> 3) << 2), t4, [2, 3, t5])
            k('s_lshl_b32 s3, s13, 14'); k('s_lshl_b32 s19, s25, 13'); k('s_add_u32 s3, s3, s19')
            k('s_sub_u32 s19, s12, 8'); k('s_lshl_b32 s19, s19, 4'); k('s_add_u32 s3, s3, s19')
            k('s_lshl_b32 s19, s24, 3'); k('s_add_u32 s3, s3, s19')
            for sl in range(8):
                k(f'buffer_store_dword {v(D+sl)}, {v(t4)}, s[68:71], s3 offen offset:{sl*128}')

class EpiG4:
    def load_ptrs(self, g, k):
        g.load_ptr(k, 28, ws('U')); g.load_ptr(k, 32, ws('Z1')); g.load_ptr(k, 36, ('bsp', 0, 4096))
    def prologue(self, g, k):
        va = g.va
        g.mk_srd(k, 28, ws('U')); g.mk_srd(k, 32, ws('Z1')); g.mk_srd(k, 36, ('bsp', 0, 4096))
        assert g.nb == 2
        self.z = va.get(g.na * 4, 4); self.b = va.get(2, 2)
        t0 = g.tm[0]
        emit_x(k, PERMROW << 1, t0, g.tm[1:])
        k(f's_mul_i32 s3, s13, {g.TN*2}'); k(f's_lshl_b32 s19, s25, 6'); k('s_add_u32 s3, s3, s19')
        for j in range(2):
            k(f'buffer_load_ushort {v(self.b+j)}, {v(t0)}, s[36:39], s3 offen offset:{8*j}')
        emit_x(k, (QG << 9) + (RHO << 4), t0, g.tm[1:])
        k(f's_mul_i32 s57, s13, {g.TN//32}'); k('s_add_u32 s57, s57, s25')
        k(f's_mul_i32 s58, s57, 114688')
        k(f's_mul_i32 s56, s12, {g.TM//16}'); k(f's_mul_i32 s19, s24, {g.na}'); k('s_add_u32 s56, s56, s19')
        for i in range(g.na):
            k(f's_add_u32 s3, s56, {i}')
            k('s_lshr_b32 s19, s3, 1'); k('s_lshl_b32 s19, s19, 11')
            k('s_and_b32 s3, s3, 1'); k('s_lshl_b32 s3, s3, 8')
            k('s_add_u32 s3, s3, s19'); k('s_add_u32 s26, s3, s58')
            k(f'buffer_load_dwordx4 {v(self.z+4*i,4)}, {v(t0)}, s[32:35], s26 offen')
    def emit(self, g, k):
        A = lambda i, j: g.acc + (i*2 + j)*4
        tmp = g.bufs[0]; vo = g.tm[0]
        k(f'v_lshlrev_b32 {v(vo)}, 4, v0')
        k(f's_mul_i32 s58, s57, {2*56*1024}')
        k('s_mov_b32 s59, 0xffff0000')
        k('s_waitcnt vmcnt(0)')
        for j in range(2): k(f'v_lshlrev_b32 {v(self.b+j)}, 16, {v(self.b+j)}')
        n = 0
        for i in range(g.na):
            k(f's_add_u32 s3, s56, {i}')
            k('s_lshr_b32 s19, s3, 1'); k('s_lshl_b32 s19, s19, 10')
            k('s_and_b32 s3, s3, 1'); k('s_lshl_b32 s3, s3, 3')
            k('s_add_u32 s3, s3, s19'); k('s_add_u32 s26, s3, s58'); k(f's_add_u32 s27, s26, {56*1024}')
            for j in range(2):
                for h in range(2):
                    c = A(i, j) + 2*h; zr = self.z + 4*i + 2*j + h
                    t = tmp + (n % 4)*2; n += 1
                    k(f'v_lshlrev_b32 {v(t)}, 16, {v(zr)}')
                    k(f'v_and_b32 {v(t+1)}, s59, {v(zr)}')
                    pk2(k, 'v_pk_add_f32', c, c, self.b+j, bb=True)
                    pk2(k, 'v_pk_mul_f32', c, c, t)
                    k(f'v_cvt_pk_bf16_f32 {v(zr)}, {v(c)}, {v(c+1)}')
                k(f'buffer_store_dwordx2 {v(self.z+4*i+2*j,2)}, {v(vo)}, s[28:31], s{26+j} offen')
```

```python
from asmlib import *
from hazard import pad

ARG = dict(x=0, sre=8, sim=16, hre=24, him=32, bx=40, win=48, wsp=56, bsp=64, wout=72, out=80, dbg=88, ws=96)
lg = lambda x: x.bit_length() - 1

class Opnd:
    def __init__(self, mode, rows, src, stride=None, ktot=None, kseg=None, perm=True, nsplit=None):
        self.mode = mode; self.rows = rows; self.src = src; self.nsplit = nsplit
        self.stride = stride; self.ktot = ktot; self.kseg = kseg; self.perm = perm

class LgkmTracker:
    def __init__(self, k):
        self.k = k; self.out = []
    def read(self, text, regs):
        self.k(text); self.out.append(set(regs))
    def need(self, regs):
        regs = set(regs); idx = -1
        for i, r in enumerate(self.out):
            if r & regs: idx = i
        if idx >= 0:
            n = len(self.out) - 1 - idx
            self.k(f's_waitcnt lgkmcnt({min(n,15)})')
            self.out = self.out[idx+1:]
    def drain(self):
        if self.out:
            self.k('s_waitcnt lgkmcnt(0)'); self.out = []

def rowperm(mf, rho, T=0):
    if mf == 32:
        return (rho & 0x13) + ((rho & 4) << 1) + ((rho & 8) >> 1)
    return rho + (rho & 12) + 4 * T

class Gemm:
    def __init__(self, name, P, Q, K, mf=32, WM=2, WN=2, NS=4, loaders=4,
                 GM=16, GN=16, XM=2, epi=None, opts=None):
        self.name = name; self.P = P; self.Q = Q; self.K = K; self.mf = mf
        self.WM = WM; self.WN = WN; self.NS = NS; self.loaders = loaders
        self.GM = GM; self.GN = GN; self.XM = XM; self.epi = epi
        self.opts = opts or {}
        self.TM = P.rows; self.TN = Q.rows
        self.R = mf; self.KF = 16 if mf == 32 else 32
        self.AR = 16 if mf == 32 else 4
        self.NCW = WM * WN
        self.WTM = self.TM // WM; self.WTN = self.TN // WN
        assert self.WTM % self.R == 0 and self.WTN % self.R == 0
        self.na = self.WTM // self.R; self.nb = self.WTN // self.R
        self.nst = K // 64
        self.slot = (self.TM + self.TN) * 128
        self.lds_extra = getattr(epi, 'lds_extra', 0)
        self.lds = self.slot * NS + self.lds_extra
        assert self.lds <= 160 * 1024, self.lds
        self.nthreads = 64 * (self.NCW + loaders)
        P.lbase = 0; Q.lbase = self.TM * 128
        self.vlimit = 512 // ((self.nthreads // 64 + 3) // 4)

    def load_ptr(self, k, sreg, seg):
        k(f's_load_dwordx2 {s(sreg,2)}, s[0:1], {ARG[seg[0]]}')
    def fix_ptr(self, k, sreg, seg):
        if seg[1]:
            k(f's_add_u32 s{sreg}, s{sreg}, {seg[1]}')
            k(f's_addc_u32 s{sreg+1}, s{sreg+1}, 0')
    def mk_srd(self, k, sreg, seg):
        self.fix_ptr(k, sreg, seg)
        k(f's_mov_b32 s{sreg+2}, {seg[2]}'); k(f's_mov_b32 s{sreg+3}, 0x20000')

    def dma_list(self):
        return [(op, j) for op in (self.P, self.Q) for j in range(op.rows // 8)]

    def tr_geom(self, op):
        rb = op.rows * 2
        return rb
    def tr_swz(self, op, krow):
        rb = op.rows * 2
        if rb % 256 == 128: return ((krow >> 1) & 1) + ((krow >> 2) & 2)
        if rb % 256 == 0: return (krow & 3) + ((krow >> 1) & 4)
        if rb % 128 == 64: return (krow >> 3) & 1
        raise ValueError(rb)

    def voff_expr(self, op, j):
        if op.mode == 'row':
            r = LANE >> 3
            if self.mf == 16 and op.perm:
                f = ((LANE >> 4) & 1) ^ ((j & 3) << 1)
            else:
                f = (LANE >> 4) ^ (4 * (j & 1))
            e = r * op.stride + (((LANE ^ f) & 7) << 4)
            return e, 8 * j * op.stride, op.rows * op.stride
        if op.mode == 'frag':
            nkb = 64 // self.KF
            rb, kb = divmod(j, nkb)
            KB = op.ktot // self.KF
            return LANE << 4, (rb * KB + kb) * 1024, op.rows // self.R * KB * 1024
        if op.mode == 'tr':
            cpr = op.rows // 8
            ci = LANE + 64 * j
            M = (1 << 16) // cpr + 1
            assert all((c * M) >> 16 == c // cpr for c in range(64 * cpr))
            kr = (ci * M) >> 16
            c = ci + kr * ((1 << 16) - cpr)
            c = c & 0xffff
            c = c ^ (self.tr_swz(op, kr) << 1)
            return kr * op.stride + (c << 4), 0, op.rows * 2
        raise ValueError
    def kstep(self, op):
        return {'row': 128, 'frag': (64 // self.KF) * 1024, 'tr': 64 * (op.stride or 0)}[op.mode]

    def emit_advance(self, k):
        k(f's_add_u32 s15, s15, {self.slot}')
        k(f's_cmp_eq_u32 s15, {self.slot*self.NS}')
        k(f's_cselect_b32 s15, 0, s15')
        k(f's_add_u32 s17, s17, {self.kstep(self.P)}')
        k(f's_add_u32 s18, s18, {self.kstep(self.Q)}')
        for op, srd, so, alt in ((self.P, 4, 17, 20), (self.Q, 8, 18, 22)):
            if len(op.src) > 1 and op.kseg:
                lim = op.kseg // 64 * self.kstep(op)
                k(f's_cmp_eq_u32 s{so}, {lim}')
                k(f's_cselect_b32 s{srd}, s{alt}, s{srd}')
                k(f's_cselect_b32 s{srd+1}, s{alt+1}, s{srd+1}')
                k(f's_cselect_b32 s{so}, 0, s{so}')

    def tilemap(self, k):
        ntiles = self.GM * self.GN
        XM = self.XM; XN = 8 // XM
        RM = self.GM // XM; RN = self.GN // XN
        assert RM * RN * 8 == ntiles and RM * XM == self.GM and RN * XN == self.GN
        k(f's_and_b32 s3, s2, 7')
        k(f's_lshr_b32 s16, s2, 3')
        k(f's_and_b32 s12, s3, {XM-1}')
        k(f's_mul_i32 s12, s12, {RM}')
        k(f's_lshr_b32 s13, s3, {lg(XM)}')
        k(f's_mul_i32 s13, s13, {RN}')
        if RM & (RM-1) == 0:
            k(f's_and_b32 s3, s16, {RM-1}')
            k(f's_add_u32 s12, s12, s3')
            k(f's_lshr_b32 s16, s16, {lg(RM)}')
            k(f's_add_u32 s13, s13, s16')
        else:
            assert RN & (RN-1) == 0
            k(f's_and_b32 s3, s16, {RN-1}')
            k(f's_add_u32 s13, s13, s3')
            k(f's_lshr_b32 s16, s16, {lg(RN)}')
            k(f's_add_u32 s12, s12, s16')

    def build(self):
        k = Kern(self.name)
        self.k = k
        P, Q = self.P, self.Q
        ntiles = self.GM * self.GN
        k.lab(self.name)
        if self.opts.get('stamp'):
            k('s_memtime s[40:41]'); k('s_memrealtime s[48:49]')
        k(f's_cmp_ge_u32 s2, {ntiles}')
        k(f's_cbranch_scc1 {self.name}_end')
        self.load_ptr(k, 4, P.src[0]); self.load_ptr(k, 8, Q.src[0])
        if len(P.src) > 1: self.load_ptr(k, 20, P.src[1])
        if len(Q.src) > 1: self.load_ptr(k, 22, Q.src[1])
        self.epi.load_ptrs(self, k)
        self.tilemap(k)
        k('v_lshrrev_b32 v1, 6, v0')
        k('v_and_b32 v0, 63, v0')
        k('v_readfirstlane_b32 s14, v1')
        k('s_mov_b32 s15, 0')
        k('s_mov_b32 s17, 0')
        k('s_mov_b32 s18, 0')
        nvs = []
        for w in range(self.loaders):
            k(f's_cmp_eq_u32 s14, {self.NCW+w}')
            k(f's_cbranch_scc1 {self.name}_ld{w}')
        nvs.append(self.build_compute(k))
        k.lab(f'{self.name}_end')
        k('s_endpgm')
        for w in range(self.loaders):
            k.lab(f'{self.name}_ld{w}')
            nvs.append(self.build_loader(k, w))
        self.nv = max(nvs)
        assert self.nv <= self.vlimit, (self.nv, self.vlimit)
        self.text = pad(k.text())
        return self.text

    def build_loader(self, k, w):
        P, Q = self.P, self.Q
        L = self.dma_list()
        mine = L[w::self.loaders]
        n = len(mine)
        va = Alloc(2)
        tm = [va.get() for _ in range(4)]
        vregs = [va.get() for _ in mine]
        for op, st, sd in ((P, 12, 26), (Q, 13, 27)):
            if op.nsplit: k(f's_and_b32 s{sd}, s{st}, {op.nsplit-1}')
            else: k(f's_mov_b32 s{sd}, s{st}')
        for (op, j), vr in zip(mine, vregs):
            e, c, mult = self.voff_expr(op, j)
            emit_x(k, e, vr, tm)
            k(f's_mul_i32 s3, s{26 if op is P else 27}, {mult}')
            if c: k(f's_add_u32 s3, s3, {c}')
            k(f'v_add_u32 {v(vr)}, s3, {v(vr)}')
        k('s_waitcnt lgkmcnt(0)')
        self.mk_srd(k, 4, P.src[0]); self.mk_srd(k, 8, Q.src[0])
        if len(P.src) > 1: self.fix_ptr(k, 20, P.src[1])
        if len(Q.src) > 1: self.fix_ptr(k, 22, Q.src[1])
        for op, st, srd, alt in ((P, 12, 4, 20), (Q, 13, 8, 22)):
            if op.nsplit:
                k(f's_cmp_ge_u32 s{st}, {op.nsplit}')
                k(f's_cselect_b32 s{srd}, s{alt}, s{srd}')
                k(f's_cselect_b32 s{srd+1}, s{alt+1}, s{srd+1}')
        NS, nst = self.NS, self.nst
        def issue():
            for (op, j), vr in zip(mine, vregs):
                srd = 4 if op is P else 8
                so = 17 if op is P else 18
                k(f's_add_u32 m0, s15, {op.lbase + j*1024}')
                k('s_nop 0')
                k(f'buffer_load_dwordx4 {v(vr)}, {s(srd,4)}, s{so} offen lds')
            self.emit_advance(k)
        if self.opts.get('noload'):
            for i in range(nst): k('s_barrier')
            k('s_endpgm'); return va.p
        pre = self.opts.get('pre', 2)
        rate = self.opts.get('rate', 2)
        issued = 0
        for i in range(min(pre, NS)): issue(); issued += 1
        i = 0
        while True:
            steady = (issued == i + NS - 1) and i >= 1
            if steady or i >= nst: break
            k(f's_waitcnt vmcnt({(issued-1-i)*n})')
            k('s_barrier')
            c = 0
            while issued <= min(i - 1 + NS, nst - 1) and c < rate:
                issue(); issued += 1; c += 1
            i += 1
        nloop = nst - issued
        if nloop > 0:
            k(f's_mov_b32 s16, {nloop}')
            lp = k.newlab('ldloop')
            k.lab(lp)
            k(f's_waitcnt vmcnt({(NS-2)*n})')
            k('s_barrier')
            issue()
            k('s_sub_u32 s16, s16, 1')
            k('s_cmp_lg_u32 s16, 0')
            k(f's_cbranch_scc1 {lp}')
            i += nloop
        while i < nst:
            k(f's_waitcnt vmcnt({(nst-1-i)*n})')
            if i < nst - 1: k('s_barrier')
            i += 1
        k('s_endpgm')
        return va.p

    def build_compute(self, k):
        P, Q = self.P, self.Q
        R, KF, AR, na, nb, mf = self.R, self.KF, self.AR, self.na, self.nb, self.mf
        nks = 32 // KF
        va = Alloc(2, min(256, self.vlimit))
        tm = [va.get() for _ in range(4)]
        self.tm = tm
        k(f's_and_b32 s24, s14, {self.WM-1}')
        k(f's_lshr_b32 s25, s14, {lg(self.WM)}')
        allregs = []
        def addr_reg(e, swave, wbytes, lbase, chk):
            assert chk(e.vals()) == 1, f'bank conflict {self.name}'
            b = va.get(); c = va.get()
            emit_x(k, e, b, tm)
            k(f's_mul_i32 s3, s{swave}, {wbytes}')
            if lbase: k(f's_add_u32 s3, s3, {lbase}')
            k(f'v_add_u32 {v(b)}, s3, {v(b)}')
            k(f'v_mov_b32 {v(c)}, {v(b)}')
            allregs.append((b, c))
            return c
        def mk_reader(op, swave, wrows):
            rho = LANE & (R-1); hq = LANE >> lg(R)
            if op.mode == 'row':
                regs = {}
                assert wrows % 32 == 0 or not op.perm
                row = rowperm(mf, rho, 0) if op.perm else rho
                if mf == 16 and op.perm: f = ((row >> 1) & 1) + ((row >> 2) & 6)
                else: f = row >> 1
                for ks in range(64 // KF):
                    e = (row << 7) + ((((hq ^ (ks*KF//8)) ^ f) & 7) << 4)
                    regs[0, ks] = addr_reg(e, swave, wrows*128, op.lbase, conflicts_b128)
                def rd(blk, ks, d):
                    if mf == 16 and op.perm:
                        return [(f'ds_read_b128 {v(d,4)}, {v(regs[0, ks])} offset:{(blk//2)*4096 + (blk&1)*512}', range(d, d+4))]
                    return [(f'ds_read_b128 {v(d,4)}, {v(regs[0, ks])} offset:{blk*R*128}', range(d, d+4))]
                return rd
            if op.mode == 'frag':
                r = addr_reg(LANE << 4, swave, wrows*128, op.lbase, conflicts_b128)
                nkb = 64 // KF
                return lambda blk, ks, d: [(f'ds_read_b128 {v(d,4)}, {v(r)} offset:{(blk*nkb+ks)*1024}', range(d, d+4))]
            if op.mode == 'tr':
                assert mf == 16
                rb = op.rows * 2
                q = LANE >> 4; r = (LANE >> 2) & 3; c = LANE & 3
                regs = {}
                wpieces = wrows // 16
                for half in range(2):
                    kr = q * 8 + r + 4 * half
                    sw = self.tr_swz(op, kr)
                    for par in range(self.tr_npar(op)):
                        regs[half, par] = None
                def col_of(blk):
                    if op.perm and not (blk == (wrows // 16) - 1 and blk % 2 == 0):
                        return (blk // 2) * 32 + (blk & 1) * 4, 8
                    return blk * 16, 4
                cache = {}
                def rd(blk, ks, d):
                    out = []
                    for half in range(2):
                        kr = q * 8 + r + 4 * half
                        base, cs = col_of(blk)
                        key = None
                        colb = (c * cs + base) * 2
                        mask = self.tr_mask(op)
                        basep = (base * 2) // 32
                        lowp = basep & mask
                        key = (half, cs, lowp, (base * 2) % 32)
                        if key not in cache:
                            cache[key] = self.tr_addr(k, va, tm, op, swave, wrows, kr, c * cs * 2 + ((base*2) % 32) + lowp * 32, allregs)
                        imm = (basep - lowp) * 32 + ks * 32 * rb
                        out.append((f'ds_read_b64_tr_b16 {v(d+2*half,2)}, {v(cache[key])} offset:{imm}', range(d+2*half, d+2*half+2)))
                    return out
                for blk in range(wrows // 16): rd(blk, 0, 0)
                return rd
        rdP = mk_reader(P, 24, self.WTM)
        rdQ = mk_reader(Q, 25, self.WTN)
        acc = va.get(na * nb * AR, 4)
        self.acc = acc
        nfr = nks * (na + nb)
        bufs = [va.get(nfr * 4, 4), va.get(nfr * 4, 4)]
        self.bufs = bufs; self.nbufregs = nfr * 4
        self.va = va
        k('s_waitcnt lgkmcnt(0)')
        self.epi.prologue(self, k)
        T = LgkmTracker(k)
        mfma = 'v_mfma_f32_32x32x16_bf16' if mf == 32 else 'v_mfma_f32_16x16x32_bf16'
        def frag(buf, isP, blk, kk):
            return bufs[buf] + (kk * (na + nb) + (blk if isP else na + blk)) * 4
        def reads(buf, phase):
            res = []
            for kk in range(nks):
                ks = phase * nks + kk
                order = []
                for i in range(max(na, nb)):
                    if i < na: order.append((True, i))
                    if i < nb: order.append((False, i))
                for isP, blk in order:
                    res += (rdP if isP else rdQ)(blk, ks, frag(buf, isP, blk, kk))
            return res
        def mfmas(buf, first=False):
            res = []
            for kk in range(nks):
                pairs = sorted([(i, j) for i in range(na) for j in range(nb)], key=lambda p: (max(p), p))
                for i, j in pairs:
                    A = frag(buf, True, i, kk); B = frag(buf, False, j, kk)
                    c = acc + (i * nb + j) * AR
                    src = '0' if (first and kk == 0) else v(c, AR)
                    if self.swap: A, B = B, A
                    res.append((f'{mfma} {v(c,AR)}, {v(A,4)}, {v(B,4)}, {src}', list(range(A, A+4)) + list(range(B, B+4))))
            return res
        rpg = self.opts.get('rpg', 2 if mf == 32 else 1)
        bpos = self.opts.get('bpos', 1 if mf == 32 else 2)
        nocomp = self.opts.get('nocomp')
        def phase(buf, rds, pre=0, mid=None, first=False):
            ms = mfmas(buf, first)
            rds = list(rds)
            per = max(rpg, -(-len(rds) // (len(ms) - pre)))
            for i, (t, regs) in enumerate(ms):
                if i == pre and mid: mid()
                if nocomp: continue
                T.need(regs); k(t)
                if i >= pre:
                    for _ in range(per):
                        if rds:
                            tt, rr = rds.pop(0); T.read(tt, rr)
            assert not rds or nocomp
        def mid():
            T.drain()
            k('s_barrier')
            k(f's_add_u32 s15, s15, {self.slot}')
            k(f's_cmp_eq_u32 s15, {self.slot*self.NS}')
            k(f's_cselect_b32 s15, 0, s15')
            for b, c in allregs:
                k(f'v_add_u32 {v(c)}, s15, {v(b)}')
        def body(last=False, first=False):
            phase(0, reads(1, 1), first=first)
            if last: phase(1, [])
            else: phase(1, reads(0, 0), pre=bpos, mid=mid)
        paths = getattr(self.epi, 'paths', [False])
        vmax = 0
        v_save = va.p
        if len(paths) > 1:
            self.epi.branch(self, k, f'{self.name}_path1')
        for pi, swap in enumerate(paths):
            self.swap = swap
            va.p = v_save
            if pi: k.lab(f'{self.name}_path1')
            if hasattr(self.epi, 'prologue2'): self.epi.prologue2(self, k, pi)
            k('s_waitcnt lgkmcnt(0)')
            k('s_barrier')
            if self.opts.get('stamp'):
                k('s_memtime s[42:43]'); k('s_waitcnt lgkmcnt(0)')
            T.out = []
            if not nocomp:
                for tt, rr in reads(0, 0): T.read(tt, rr)
            body(first=True)
            k(f's_mov_b32 s16, {self.nst-2}')
            lp = k.newlab('cloop')
            k('.p2align 3')
            k.lab(lp)
            st0 = [set(x) for x in T.out]
            body()
            assert [set(x) for x in T.out] == st0 or nocomp
            k('s_sub_u32 s16, s16, 1')
            k('s_cmp_lg_u32 s16, 0')
            k(f's_cbranch_scc1 {lp}')
            body(last=True)
            if self.opts.get('stamp'):
                k('s_memtime s[44:45]')
            if len(paths) > 1: self.epi.emit(self, k, pi)
            else: self.epi.emit(self, k)
            vmax = max(vmax, va.p)
            if pi < len(paths) - 1: k(f's_branch {self.name}_fin')
        va.p = vmax
        k.lab(f'{self.name}_fin')
        if self.opts.get('stamp'):
            k('s_waitcnt vmcnt(0)')
            k('s_memtime s[46:47]'); k('s_memrealtime s[50:51]')
            k(f's_load_dwordx2 s[52:53], s[0:1], {ARG["ws"]}')
            k('s_waitcnt lgkmcnt(0)')
            k(f's_add_u32 s52, s52, {0x8000000 + self.opts.get("stampoff", 0)}'); k('s_addc_u32 s53, s53, 0')
            k('s_mov_b32 s54, 0x100000'); k('s_mov_b32 s55, 0x20000')
            k('s_lshl_b32 s3, s2, 2'); k('s_and_b32 s19, s14, 3'); k('s_add_u32 s3, s3, s19'); k('s_lshl_b32 s3, s3, 6')
            for i in range(12):
                k(f'v_mov_b32 v2, s{40+i}')
                k(f'v_mov_b32 v3, {4*i}')
                k('buffer_store_dword v2, v3, s[52:55], s3 offen')
                k('s_nop 1')
        return va.p

    def tr_npar(self, op): return 1
    def tr_mask(self, op):
        rb = op.rows * 2
        if rb % 256 == 128: return 3
        if rb % 256 == 0: return 7
        return 1
    def tr_addr(self, k, va, tm, op, swave, wrows, kr, colb, allregs):
        rb = op.rows * 2
        b = va.get(); c = va.get()
        nw = op.rows // wrows
        for w in range(nw):
            e = kr * rb + ((colb + w * wrows * 2) ^ (self.tr_swz(op, kr) << 5))
            assert conflicts_b64(e.vals()) == 1, f'tr bank conflict {self.name} {conflicts_b64(e.vals())}'
        emit_x(k, colb, b, tm)
        k(f's_mul_i32 s3, s{swave}, {wrows*2}')
        k(f'v_add_u32 {v(b)}, s3, {v(b)}')
        emit_x(k, self.tr_swz(op, kr) << 5, tm[3], tm[:3])
        k(f'v_xor_b32 {v(b)}, {v(b)}, {v(tm[3])}')
        emit_x(k, kr * rb + op.lbase, tm[3], tm[:3])
        k(f'v_add_u32 {v(b)}, {v(b)}, {v(tm[3])}')
        k(f'v_mov_b32 {v(c)}, {v(b)}')
        allregs.append((b, c))
        return c

class EpiPlain:
    def __init__(self, dst, mtot):
        self.dst = dst; self.mtot = mtot
    def load_ptrs(self, g, k): g.load_ptr(k, 28, self.dst)
    def prologue(self, g, k): g.mk_srd(k, 28, self.dst)
    def emit(self, g, k):
        va = g.va
        vo = va.get(); pk = g.bufs[0]
        R, KF = g.R, g.KF
        KB = self.mtot // KF
        k(f's_mul_i32 s3, s13, {g.TN//R}')
        k(f's_mul_i32 s26, s25, {g.WTN//R}')
        k(f's_add_u32 s3, s3, s26')
        k(f's_mul_i32 s3, s3, {KB}')
        k(f's_mul_i32 s26, s12, {g.TM//KF}')
        k(f's_add_u32 s3, s3, s26')
        k(f's_mul_i32 s26, s24, {g.WTM//KF}')
        k(f's_add_u32 s3, s3, s26')
        k(f's_lshl_b32 s3, s3, 10')
        k(f'v_lshlrev_b32 {v(vo)}, 4, v0')
        n = 0
        for j in range(g.nb):
            for kb in range(g.WTM // KF):
                p = pk + (n % 4) * 4; n += 1
                if g.mf == 32:
                    c = g.acc + ((kb//2) * g.nb + j) * 16 + (kb & 1) * 8
                    regs = [c + d for d in range(8)]
                else:
                    regs = [g.acc + ((2*kb) * g.nb + j) * 4 + d for d in range(4)] + [g.acc + ((2*kb+1) * g.nb + j) * 4 + d for d in range(4)]
                for d in range(4):
                    k(f'v_cvt_pk_bf16_f32 {v(p+d)}, {v(regs[2*d])}, {v(regs[2*d+1])}')
                k(f's_add_u32 s26, s3, {(j*KB + kb)*1024}')
                k(f'buffer_store_dwordx4 {v(p,4)}, {v(vo)}, s[28:31], s26 offen')

def make_file(kernels, launches):
    hdr = [f'; @launch kernel={n} grid=({g},1,1) block=({b},1,1) lds={l}' for (n, g, b, l) in launches]
    out = '\n'.join(hdr) + '\n.amdgcn_target "amdgcn-amd-amdhsa--gfx950"\n.text\n'
    for kn in kernels:
        out += f'.globl {kn.name}\n.p2align 8\n.type {kn.name},@function\n' + kn.text + '\n'
    out += '.section .rodata,"a"\n'
    for kn in kernels:
        out += kd(kn.name, kn.nv)
    return out
```

```python
import re
RV = re.compile(r'\b([vas])\[(\d+):(\d+)\]|\b([vas])(\d+)\b|\b(vcc|m0|exec)\b')
TRANS = ('v_exp_f32', 'v_log_f32', 'v_rcp_f32', 'v_rsq_f32', 'v_sqrt_f32', 'v_sin_f32', 'v_cos_f32')
def regs(tok):
    out = set()
    for m in RV.finditer(tok):
        if m.group(1): out |= {(m.group(1), i) for i in range(int(m.group(2)), int(m.group(3)) + 1)}
        elif m.group(4): out.add((m.group(4), int(m.group(5))))
        else: out.add((m.group(6), 0))
    return out
class I:
    def __init__(self, line):
        self.line = line
        t = line.split(';')[0].strip()
        self.op = t.split()[0] if t else ''
        rest = t[len(self.op):].strip()
        ops = [x.strip() for x in rest.split(',')] if rest else []
        op = self.op
        self.valu = op.startswith('v_') and not op.startswith('v_mfma')
        self.mfma = op.startswith('v_mfma')
        self.salu = op.startswith('s_')
        self.vmem = op.startswith(('buffer_', 'global_', 'flat_'))
        self.ds = op.startswith('ds_')
        self.dpp = 'row_' in t or 'quad_perm' in t or '_dpp' in op or 'row_bcast' in t
        self.perm = op.startswith('v_permlane')
        self.rl = op.startswith(('v_readlane', 'v_readfirstlane'))
        self.trans = op.replace('_e32', '').replace('_e64', '') in TRANS
        self.lds_dma = self.vmem and (t.endswith(' lds') or 'global_load_lds' in op)
        self.w = set(); self.r = set(); self.srcc = set()
        if self.valu or self.mfma:
            self.w = regs(ops[0]); self.r = set().union(*[regs(x) for x in ops[1:]]) if len(ops) > 1 else set()
            if op.startswith(('v_add_co', 'v_addc_co', 'v_sub_co', 'v_subb_co')):
                self.w |= regs(ops[1])
            if self.perm: self.w |= regs(ops[1]); self.r |= regs(ops[0])
            if op.startswith(('v_fmac', 'v_dot2c', 'v_pk_fmac')): self.r |= regs(ops[0])
            if op.startswith('v_cndmask') and len(ops) == 3: self.r.add(('vcc', 0))
            if self.dpp: self.r |= regs(ops[0])
            if self.mfma: self.srcc = regs(ops[3])
        elif self.vmem:
            if 'store' in op or 'atomic' in op or self.lds_dma or op in ('buffer_inv', 'buffer_wbl2'):
                self.r = set().union(*[regs(x) for x in ops]) if ops else set()
                if self.lds_dma: self.r.add(('m0', 0))
            else:
                self.w = regs(ops[0]); self.r = set().union(*[regs(x) for x in ops[1:]])
            self.wide = ('store' in op and ('x3' in op or 'x4' in op))
            self.data = regs(ops[0] if op.startswith('buffer') else ops[1]) if 'store' in op else set()
        elif self.ds:
            if op.startswith(('ds_write', 'ds_add')):
                self.r = set().union(*[regs(x) for x in ops])
            else:
                self.w = regs(ops[0]); self.r = set().union(*[regs(x) for x in ops[1:]])
        elif self.salu and ops and not op.startswith(('s_cmp', 's_cbranch', 's_branch', 's_waitcnt', 's_nop', 's_barrier', 's_setprio', 's_sleep', 's_endpgm')):
            self.w = regs(ops[0]); self.r = set().union(*[regs(x) for x in ops[1:]]) if len(ops) > 1 else set()
        self.states = 1
        if op == 's_nop': self.states = int(ops[0]) + 1
        self.isinst = bool(op) and not op.endswith(':') and not op.startswith('.')
        if self.mfma: self.passes = 8 if '32x32' in op else 4
def need(p, c):
    n = 0
    vw = {x for x in p.w if x[0] in 'va'}
    sw = {x for x in p.w if x[0] in ('s', 'vcc')}
    if p.valu:
        if vw & c.r:
            if c.dpp or c.perm or c.mfma: n = max(n, 2)
            if c.rl: n = max(n, 1)
            if p.trans and c.valu and not c.trans: n = max(n, 1)
            if p.trans and (c.vmem or c.ds or c.trans): n = max(n, 1)
            if ('sdwa' in p.line or 'op_sel' in p.line) and not p.op.startswith('v_pk'): n = max(n, 1)
        if sw & c.r:
            if c.valu: n = max(n, 4 if c.rl else 2)
            if c.vmem: n = max(n, 5)
            if c.salu: n = max(n, 1)
    if p.mfma:
        d = 12 if p.passes == 8 else 8
        if c.mfma:
            if vw & (c.r - c.srcc): n = max(n, d)
            elif vw & c.srcc and c.srcc != vw: n = max(n, d - 2)
        elif (vw & (c.r | c.w)): n = max(n, d)
        if c.valu and (p.srcc & c.w): n = max(n, 7 if p.passes == 8 else 3)
    if p.vmem and getattr(p, 'wide', False) and (p.data & c.w): n = max(n, 2)
    if p.salu and ('m0', 0) in p.w and c.lds_dma: n = max(n, 1)
    return n
def pad(text):
    out = []; hist = []
    for line in text.split('\n'):
        c = I(line)
        if not c.isinst:
            out.append(line); continue
        dist = 0; req = 0
        for p in reversed(hist):
            nn = need(p, c)
            if nn > dist: req = max(req, nn - dist)
            dist += p.states
            if dist >= 12: break
        while req > 0:
            x = min(req, 16)
            nop = I(f'  s_nop {x-1}'); out.append(nop.line); hist.append(nop); req -= x
        out.append(line); hist.append(c)
        hist = hist[-16:]
    return '\n'.join(out)
```

```python
from epi import *

class Simple:
    pass

def srd(k, r, seg):
    if seg[1]:
        k(f's_add_u32 s{r}, s{r}, {seg[1]}'); k(f's_addc_u32 s{r+1}, s{r+1}, 0')
    k(f's_mov_b32 s{r+2}, {seg[2]}'); k(f's_mov_b32 s{r+3}, 0x20000')
def ldp(k, r, seg): k(f's_load_dwordx2 {s(r,2)}, s[0:1], {ARG[seg[0]]}')

def unpack_acc(k, src, n, S, SS, tmp, mask, first):
    for i in range(n):
        t = tmp + 2*(i % 2)
        k(f'v_lshlrev_b32 {v(t)}, 16, {v(src+i)}')
        k(f'v_and_b32 {v(t+1)}, s{mask}, {v(src+i)}')
        if first and i == 0:
            k(f'v_mov_b32 {v(S)}, {v(t)}'); k(f'v_mov_b32 {v(S+1)}, {v(t+1)}')
            if SS is not None: pk2(k, 'v_pk_mul_f32', SS, t, t)
        else:
            pk2(k, 'v_pk_add_f32', S, S, t)
            if SS is not None: pk_fma(k, SS, t, t, SS)

def prep_kernel(name='prep_kernel'):
    k = Kern(name); k.lab(name)
    NX, NH, NW = 256, 256, 112
    k(f's_cmp_ge_u32 s2, {NX+NH+NW}'); k(f's_cbranch_scc1 {name}_end')
    X0 = ('x', 0, 4*MB)
    ldp(k, 4, X0); ldp(k, 8, ws('X')); ldp(k, 12, ws('XST'))
    ldp(k, 16, ('hre', 0, 2*MB)); ldp(k, 20, ('him', 0, 2*MB)); ldp(k, 24, ws('HSUM'))
    ldp(k, 28, ('win', 0, 7340032)); ldp(k, 32, ws('WSUM'))
    k('v_lshrrev_b32 v1, 6, v0'); k('v_and_b32 v0, 63, v0'); k('v_readfirstlane_b32 s36, v1')
    k('s_mov_b32 s40, 0xffff0000')
    k('s_waitcnt lgkmcnt(0)')
    srd(k, 4, X0); srd(k, 8, ws('X')); srd(k, 12, ws('XST')); srd(k, 16, ('hre', 0, 2*MB)); srd(k, 20, ('him', 0, 2*MB))
    srd(k, 24, ws('HSUM')); srd(k, 28, ('win', 0, 7340032)); srd(k, 32, ws('WSUM'))
    k('s_lshl_b32 s37, s2, 2'); k('s_add_u32 s37, s37, s36')
    k(f's_cmp_ge_u32 s2, {NX+NH}'); k(f's_cbranch_scc1 {name}_w')
    k(f's_cmp_ge_u32 s2, {NX}'); k(f's_cbranch_scc1 {name}_h')
    k('s_lshr_b32 s38, s37, 4'); k('s_and_b32 s39, s37, 15')
    emit_x(k, (PERMROW << 11) + (QG << 4), 2, [3, 4, 5])
    k('s_lshl_b32 s3, s38, 16'); k('s_lshl_b32 s41, s39, 7'); k('s_add_u32 s3, s3, s41')
    k(f's_add_u32 s41, s3, {4*2048}')
    for T in range(2):
        for kb in range(2):
            k(f'buffer_load_dwordx4 {v(8+(T*2+kb)*4,4)}, v2, s[4:7], s{3 if T == 0 else 41} offen offset:{kb*64}')
    k('v_lshlrev_b32 v3, 4, v0')
    k('s_lshl_b32 s3, s38, 16'); k('s_lshl_b32 s41, s39, 11'); k('s_add_u32 s3, s3, s41'); k(f's_add_u32 s41, s3, {32*1024}')
    k('s_waitcnt vmcnt(0)')
    for T in range(2):
        for kb in range(2):
            k(f'buffer_store_dwordx4 {v(8+(T*2+kb)*4,4)}, v3, s[8:11], s{3 if T == 0 else 41} offen offset:{kb*1024}')
    st = 24
    for T in range(2):
        unpack_acc(k, 8 + T*8, 8, st+4*T, st+4*T+2, 4, 40, True)
    for j in range(2):
        k(f'v_add_f32 {v(st+4*j)}, {v(st+4*j)}, {v(st+4*j+1)}')
        k(f'v_add_f32 {v(st+4*j+2)}, {v(st+4*j+2)}, {v(st+4*j+3)}')
    for j in range(2): k(f'v_permlane32_swap_b32 {v(st+4*j)}, {v(st+4*j+2)}')
    for j in range(2): k(f'v_add_f32 {v(st+4*j)}, {v(st+4*j)}, {v(st+4*j+2)}')
    k(f'v_permlane16_swap_b32 {v(st)}, {v(st+4)}')
    k(f'v_add_f32 {v(st)}, {v(st)}, {v(st+4)}')
    emit_x(k, ((PERMROW + ((QG & 1) << 2)) << 7) + ((QG >> 1) << 2), 2, [3, 4, 5])
    k('s_lshl_b32 s3, s38, 12'); k('s_lshl_b32 s41, s39, 3'); k('s_add_u32 s3, s3, s41')
    k(f'buffer_store_dword {v(st)}, v2, s[12:15], s3 offen')
    k('s_endpgm')
    k.lab(f'{name}_h')
    k(f's_sub_u32 s37, s37, {NX*4}')
    k('v_lshlrev_b32 v2, 4, v0'); k('s_lshl_b32 s3, s37, 11')
    for m, sr in enumerate((16, 20)):
        for c in range(2):
            k(f'buffer_load_dwordx4 {v(8+(m*2+c)*4,4)}, v2, {s(sr,4)}, s3 offen offset:{c*1024}')
    k('s_waitcnt vmcnt(0)')
    for m in range(2):
        unpack_acc(k, 8 + m*8, 8, 24+2*m, None, 4, 40, True)
        k(f'v_add_f32 {v(24+2*m)}, {v(24+2*m)}, {v(25+2*m)}')
    k('v_permlane32_swap_b32 v24, v26'); k('v_add_f32 v24, v24, v26')
    k('v_mov_b32 v25, v24'); k('v_permlane16_swap_b32 v24, v25'); k('v_add_f32 v24, v24, v25')
    for d in ('row_ror:8', 'row_ror:4', 'row_ror:2', 'row_ror:1'):
        k(f'v_add_f32_dpp v24, v24, v24 {d} row_mask:0xf bank_mask:0xf')
    emit_x(k, (LANE >> 5) << 12, 2, [3, 4])
    k('s_lshl_b32 s3, s37, 2')
    k('buffer_store_dword v24, v2, s[24:27], s3 offen')
    k('s_endpgm')
    k.lab(f'{name}_w')
    k(f's_sub_u32 s37, s37, {(NX+NH)*4}')
    k(f's_mul_i32 s38, s37, {65536//28+1}'); k('s_lshr_b32 s38, s38, 16')
    k('s_mul_i32 s3, s38, 28'); k('s_sub_u32 s39, s37, s3')
    emit_x(k, QG * 7168 + (RHO << 4), 2, [3, 4])
    k(f's_mul_i32 s3, s38, {64*7168}'); k('s_lshl_b32 s41, s39, 8'); k('s_add_u32 s3, s3, s41')
    for i in range(16):
        k(f'buffer_load_dwordx4 {v(16+4*i,4)}, v2, s[28:31], s3 offen')
        if i < 15: k(f's_add_u32 s3, s3, {4*7168}')
    for i in range(16):
        k(f's_waitcnt vmcnt({15-i})')
        for d in range(4):
            t = 4 + 2*(d % 2)
            k(f'v_lshlrev_b32 {v(t)}, 16, {v(16+4*i+d)}'); k(f'v_and_b32 {v(t+1)}, s40, {v(16+4*i+d)}')
            if i == 0: k(f'v_mov_b32 {v(8+2*d)}, {v(t)}'); k(f'v_mov_b32 {v(9+2*d)}, {v(t+1)}')
            else: pk2(k, 'v_pk_add_f32', 8+2*d, 8+2*d, t)
    for e in range(4): k(f'v_permlane32_swap_b32 {v(8+e)}, {v(12+e)}')
    for e in range(4): k(f'v_add_f32 {v(8+e)}, {v(8+e)}, {v(12+e)}')
    for e in range(2): k(f'v_permlane16_swap_b32 {v(8+e)}, {v(10+e)}')
    for e in range(2): k(f'v_add_f32 {v(8+e)}, {v(8+e)}, {v(10+e)}')
    emit_x(k, (RHO << 5) + (QG << 3), 2, [3, 4])
    k(f's_mul_i32 s3, s38, {3584*4}'); k('s_lshl_b32 s41, s39, 9'); k('s_add_u32 s3, s3, s41')
    k('buffer_store_dwordx2 v[8:9], v2, s[32:35], s3 offen')
    k.lab(f'{name}_end')
    k('s_endpgm')
    o = Simple(); o.name = name; o.text = pad(k.text()); o.nv = 80; o.grid = NX+NH+NW; o.nthreads = 256; o.lds = 0
    return o

def norm_kernel(name='norm_kernel'):
    k = Kern(name); k.lab(name)
    k('s_cmp_ge_u32 s2, 256'); k(f's_cbranch_scc1 {name}_end')
    ldp(k, 4, ws('Z2')); ldp(k, 8, ws('ZST'))
    k('v_lshrrev_b32 v1, 6, v0'); k('v_and_b32 v0, 63, v0'); k('v_readfirstlane_b32 s14, v1')
    k('s_lshr_b32 s12, s2, 2'); k('s_and_b32 s13, s2, 3')
    k('s_mov_b32 s20, 0xffff0000')
    k('s_waitcnt lgkmcnt(0)')
    srd(k, 4, ws('Z2')); srd(k, 8, ws('ZST'))
    emit_x(k, ((LANE & 31) << 7) + ((LANE >> 5) << 6), 2, [3, 4])
    k('s_lshl_b32 s3, s12, 12')
    for i in range(4): k(f'buffer_load_dwordx4 {v(8+4*i,4)}, v2, s[8:11], s3 offen offset:{16*i}')
    k('v_lshlrev_b32 v3, 4, v0')
    k('s_mul_i32 s15, s13, 28'); k('s_mul_i32 s3, s14, 7'); k('s_add_u32 s15, s15, s3'); k('s_lshl_b32 s15, s15, 16')
    k('s_lshl_b32 s3, s12, 10'); k('s_add_u32 s15, s15, s3')
    D = 40
    for i in range(7):
        k(f's_add_u32 s3, s15, {i*65536}')
        k(f'buffer_load_dwordx4 {v(D+4*i,4)}, v3, s[4:7], s3 offen')
    k('s_waitcnt vmcnt(7)')
    b = 8
    for st in (4, 2, 1):
        for i in range(st): pk2(k, 'v_pk_add_f32', b+2*i, b+2*i, b+2*(i+st))
    k('v_mov_b32 v10, v8'); k('v_mov_b32 v11, v9')
    k('v_permlane32_swap_b32 v8, v10'); k('v_permlane32_swap_b32 v9, v11')
    pk2(k, 'v_pk_add_f32', 8, 8, 10)
    k(f'v_mul_f32 v8, {f2u(1.0/1792)}, v8'); k(f'v_mul_f32 v9, {f2u(1.0/1792)}, v9')
    k('v_fma_f32 v9, -v8, v8, v9'); k('v_max_f32 v9, 0, v9'); k(f'v_add_f32 v9, {f2u(1e-5)}, v9')
    k('v_rsq_f32 v9, v9'); k('v_mul_f32 v8, v8, v9'); k('v_sub_f32 v8, 0, v8')
    emit_x(k, QG << 5, 2, [4, 5])
    R, NM = 16, 24
    for e in range(8):
        k(f'ds_bpermute_b32 {v(R+e)}, v2, v9 offset:{4*e}')
        k(f'ds_bpermute_b32 {v(NM+e)}, v2, v8 offset:{4*e}')
    k('s_waitcnt lgkmcnt(0)')
    for i in range(7):
        k(f's_waitcnt vmcnt({6-i})') if True else None
        for d in range(4):
            t = 32 + 2*(d % 4)
            k(f'v_lshlrev_b32 {v(t)}, 16, {v(D+4*i+d)}'); k(f'v_and_b32 {v(t+1)}, s20, {v(D+4*i+d)}')
            pk_fma(k, t, t, R+2*d, NM+2*d)
            k(f'v_cvt_pk_bf16_f32 {v(D+4*i+d)}, {v(t)}, {v(t+1)}')
    for i in range(7):
        k(f's_add_u32 s3, s15, {i*65536}')
        k(f'buffer_store_dwordx4 {v(D+4*i,4)}, v3, s[4:7], s3 offen')
    k.lab(f'{name}_end')
    k('s_endpgm')
    o = Simple(); o.name = name; o.text = pad(k.text()); o.nv = 72; o.grid = 256; o.nthreads = 256; o.lds = 0
    return o
```

```python
import sys
from misc import *
def build_all(stamp=False, cfg=None):
    cfg = cfg or {}
    idx = [0]
    def O(**kw):
        o = dict(kw)
        if stamp: o.update(stamp=1, stampoff=idx[0] * 65536); idx[0] += 1
        return o
    S8 = 8*MB
    g1 = Gemm('g1_kernel', Opnd('frag', 128, [ws('X')], ktot=1024),
              Opnd('row', 128, [('hre', 0, 2*MB), ('him', 0, 2*MB)], stride=2048, nsplit=8), 1024,
              mf=16, NS=4, GM=16, GN=16, XM=2, epi=EpiG1(), opts=O())
    g2 = Gemm('g2_kernel', Opnd('frag', 128, [ws('AB')], ktot=4096),
              Opnd('row', 64, [('sre', 0, S8), ('sim', 0, S8)], stride=4096, kseg=2048), 4096,
              mf=16, NS=6, GM=8, GN=32, XM=2, epi=EpiRes(), opts=O())
    g3 = Gemm('g3_kernel', Opnd('tr', 224, [('win', 0, 7340032)], stride=7168, perm=False),
              Opnd('frag', 128, [ws('X')], ktot=1024), 1024,
              mf=16, NS=3, GM=16, GN=16, XM=4, epi=EpiG3(), opts=O())
    g4 = Gemm('g4_kernel', Opnd('frag', 112, [ws('Z2')], ktot=2048),
              Opnd('row', 128, [('wsp', 0, S8)], stride=4096), 2048,
              mf=16, WM=1, WN=4, NS=5, GM=16, GN=16, XM=2, epi=EpiG4(), opts=O())
    def mk5(name, final):
        return Gemm(name, Opnd('tr', 128, [('wout', 0, 3670016)], stride=2048, perm=False),
              Opnd('frag', 64, [ws('U')], ktot=1792), 1792,
              mf=16, NS=6, GM=8, GN=32, XM=2, epi=EpiRes(shuffle=True, final=final), opts=O())
    g5 = mk5('g5_kernel', False); g5f = mk5('g5f_kernel', True)
    gs = [g1, g2, g3, g4, g5, g5f]
    for g in gs:
        g.build(); g.grid = g.GM * g.GN
    pr = prep_kernel(); nm = norm_kernel()
    order = [pr, g1, g2, g3, nm, g4, g5, g1, g2, g3, nm, g4, g5f]
    return [pr, nm] + gs, order
HDR = open('interleave_layers__spectral_fnet__mixer_gmlp__prompt.s.ref').read().split('; Override')[0]
if __name__ == '__main__':
    stamp = '--stamp' in sys.argv
    ks, order = build_all(stamp)
    t = make_file(ks, [(o.name, o.grid, o.nthreads, o.lds) for o in order])
    out = sys.argv[1]
    open(out, 'w').write(HDR + t)
    for o in ks: print(o.name, 'vgpr', o.nv, 'lds', o.lds, 'lines', o.text.count('\n'))
```
